```python
import torch

def _softmax(x, axis=-1):
    return torch.softmax(x, dim=axis)
def _gelu(x):
    return torch.nn.functional.gelu(x, approximate="tanh")
def _silu(x):
    return torch.nn.functional.silu(x)
def _sigmoid(x):
    return torch.sigmoid(x)
def _layernorm(x, axis=-1, eps=1e-5):
    m = x.mean(dim=axis, keepdim=True)
    v = x.var(dim=axis, keepdim=True, unbiased=False)
    return (x - m) / torch.sqrt(v + eps)
def _scatter_add(tgt, idx, src, axis=0):
    return tgt.clone().index_add_(axis, idx, src)
def _segment_sum(src, seg, n):
    out = torch.zeros((n,) + src.shape[1:], dtype=src.dtype)
    return out.index_add_(0, seg, src)
def _pad(x, pw):
    flat = tuple(v for pair in reversed(pw) for v in pair)
    return torch.nn.functional.pad(x, flat)

kernel_name = 'standalone__detection_seg_mask2former__vision'

def setup_inputs():

    _w = (lambda a: (lambda t: t.to(torch.bfloat16) if t.is_floating_point() else t)(torch.as_tensor(a)))
    H = W = 224
    C = 192
    Hc, Wc = H // 2, W // 2
    nh = 4
    Nq = 16
    sc = C ** -0.5
    return {
        "q": _w((lambda *s: torch.randn(*s, dtype=torch.bfloat16) * 0.2)(1, Nq, C)),
        "f_hi": _w((lambda *s: torch.randn(*s, dtype=torch.bfloat16) * 0.2)(1, H, W, C)),
        "f_lo": _w((lambda *s: torch.randn(*s, dtype=torch.bfloat16) * 0.4)(1, Hc, Wc, C)),
        "w_lat": _w((lambda *s: torch.randn(*s, dtype=torch.bfloat16) * 0.4)(C, C) * sc),
        "w_q": _w((lambda *s: torch.randn(*s, dtype=torch.bfloat16) * 3.2)(nh, C, C // nh) * sc),
        "w_k": _w((lambda *s: torch.randn(*s, dtype=torch.bfloat16) * 3.2)(nh, C, C // nh) * sc),
        "w_v": _w((lambda *s: torch.randn(*s, dtype=torch.bfloat16) * 3.2)(nh, C, C // nh) * sc),
        "w_o": _w((lambda *s: torch.randn(*s, dtype=torch.bfloat16) * 3.2)(C, C) * sc),
        "w_m": _w((lambda *s: torch.randn(*s, dtype=torch.bfloat16) * 3.2)(C, C) * sc),
    }

def reference(q, f_hi, f_lo, w_lat, w_q, w_k, w_v, w_o, w_m):
    B, Nq, C = q.shape
    _, H, W, _ = f_hi.shape
    nh = w_q.shape[0]
    dh = C // nh
    up = (lambda x, n, axis: torch.repeat_interleave(x, n, dim=axis))((lambda x, n, axis: torch.repeat_interleave(x, n, dim=axis))(f_lo, 2, axis=1), 2, axis=2)
    feat = f_hi + up @ w_lat
    feat = _layernorm(feat, axis=-1)
    kv = feat.reshape(B, H * W, C)
    m_embed = q @ w_m
    mask_bias = torch.einsum('bqc,bkc->bqk', m_embed, kv) * (C ** -0.5)
    Q = torch.einsum('bqc,hcd->bhqd', q, w_q)
    K = torch.einsum('bkc,hcd->bhkd', kv, w_k)
    V = torch.einsum('bkc,hcd->bhkd', kv, w_v)
    logits = torch.einsum('bhqd,bhkd->bhqk', Q, K) * (dh ** -0.5)
    logits = logits + mask_bias[:, None, :, :]
    attn = _softmax(logits, axis=-1)
    ctx = torch.einsum('bhqk,bhkd->bqhd', attn, V).reshape(B, Nq, C)
    return q + ctx @ w_o
```

```python
HEADER = """; Kernarg layout for this problem (96 bytes, ptrs only, base s[0:1]):
"""
NAME = "standalone__detection_seg_mask2former__vision"

class Asm:
    def __init__(self):
        self.lines = []
        self.uid = 0
    def __call__(self, s):
        for l in s.strip("\n").split("\n"):
            self.lines.append("    " + l.strip() if not l.strip().endswith(":") else l.strip())
    def c(self, s):
        self.lines.append("    ; " + s)
    def label(self, base="L"):
        self.uid += 1
        return f"{base}_{self.uid}"
    def text(self):
        return "\n".join(self.lines) + "\n"

def vr(base, n=1):
    return f"v{base}" if n == 1 else f"v[{base}:{base+n-1}]"
def ar(base, n=1):
    return f"a{base}" if n == 1 else f"a[{base}:{base+n-1}]"
def sr(base, n=1):
    return f"s{base}" if n == 1 else f"s[{base}:{base+n-1}]"

def kernel_begin(label):
    return f".globl {label}\n.p2align 8\n.type {label},@function\n{label}:\n"

def kernel_desc(label, vgpr, sgpr=102, accum=None, wgy=False):
    if accum is None:
        accum = min(256, (vgpr + 3) // 4 * 4)
    return f""".amdhsa_kernel {label}
  .amdhsa_next_free_vgpr {vgpr}
  .amdhsa_next_free_sgpr {sgpr}
  .amdhsa_accum_offset {accum}
  .amdhsa_group_segment_fixed_size 0
  .amdhsa_kernarg_size 96
  .amdhsa_user_sgpr_count 2
  .amdhsa_user_sgpr_kernarg_segment_ptr 1
  .amdhsa_system_sgpr_workgroup_id_x 1
.end_amdhsa_kernel
"""

def build_file(launch_lines, kernels):
    s = HEADER
    for l in launch_lines:
        s += l + "\n"
    s += '.amdgcn_target "amdgcn-amd-amdhsa--gfx950"\n.text\n'
    for (label, body, vgpr, sgpr, accum) in kernels:
        s += kernel_begin(label) + body
    s += '.section .rodata,"a"\n'
    for (label, body, vgpr, sgpr, accum) in kernels:
        s += ".p2align 6\n" + kernel_desc(label, vgpr, sgpr, accum)
    return s
```

```python
import re

TRANS = ("v_exp_f32", "v_log_f32", "v_rcp_f32", "v_rsq_f32", "v_sqrt_f32", "v_sin_f32", "v_cos_f32")

def regs_of(tok):
    tok = tok.strip()
    neg = tok.lstrip("-")
    if neg.startswith("abs(") or neg.startswith("|"):
        neg = neg.replace("abs(", "").replace(")", "").replace("|", "")
    m = re.fullmatch(r"([vsa])(\d+)", neg)
    if m: return {(m.group(1), int(m.group(2)))}
    m = re.fullmatch(r"([vsa])\[(\d+):(\d+)\]", neg)
    if m: return {(m.group(1), i) for i in range(int(m.group(2)), int(m.group(3)) + 1)}
    if neg == "vcc": return {("s", "vcc_lo"), ("s", "vcc_hi")}
    if neg in ("vcc_lo", "vcc_hi"): return {("s", neg)}
    if neg == "exec": return {("s", "exec_lo"), ("s", "exec_hi")}
    if neg in ("exec_lo", "exec_hi"): return {("s", neg)}
    if neg == "m0": return {("s", "m0")}
    return set()

class Ins:
    __slots__ = ("text", "op", "args", "kind", "wr", "rd", "passes", "srcC", "srcAB", "label", "target", "nop", "dpp", "store_data", "lds_dma")
    def __init__(self, text):
        self.text = text
        t = text.split(";")[0].strip()
        self.label = None; self.target = None; self.nop = 0
        self.wr = set(); self.rd = set(); self.passes = 0; self.srcC = set(); self.srcAB = set()
        self.dpp = False; self.store_data = set(); self.lds_dma = False
        if not t or t.startswith("."):
            self.kind = "none"; self.op = ""; self.args = []; return
        if t.endswith(":"):
            self.kind = "label"; self.label = t[:-1]; self.op = ""; self.args = []; return
        parts = t.split(None, 1)
        self.op = op = parts[0]
        rest = parts[1] if len(parts) > 1 else ""
        args = []; cur = ""; depth = 0
        for ch in rest:
            if ch == "[": depth += 1
            if ch == "]": depth -= 1
            if ch == "," and depth == 0:
                args.append(cur.strip()); cur = ""
            else: cur += ch
        if cur.strip(): args.append(cur.strip())
        mods = ""
        if args:
            sp = args[-1].split(None, 1)
            args[-1] = sp[0]
            if len(sp) > 1: mods = sp[1]
        self.args = args
        R = regs_of
        if op.startswith("v_mfma"):
            self.kind = "mfma"
            self.wr = R(args[0]); self.srcAB = R(args[1]) | R(args[2]); self.srcC = R(args[3])
            self.rd = self.srcAB | self.srcC
            if "16x16x4_f32" in op: self.passes = 8; self.kind = "sgemm"
            elif "32x32x2_f32" in op: self.passes = 16; self.kind = "sgemm"
            elif "32x32" in op: self.passes = 8
            else: self.passes = 4
        elif op.startswith("v_"):
            self.kind = "valu"
            if "dpp" in op or "row_" in mods or "quad_perm" in mods: self.dpp = True
            if op.startswith("v_cmp"):
                self.wr = R(args[0]);
                for a in args[1:]: self.rd |= R(a)
            elif op.startswith("v_permlane") and "swap" in op:
                self.wr = R(args[0]) | R(args[1]); self.rd = set(self.wr); self.kind = "permlane"
            elif op.startswith("v_readfirstlane") or op.startswith("v_readlane"):
                self.wr = R(args[0]); self.kind = "readlane"
                for a in args[1:]: self.rd |= R(a)
            else:
                self.wr = R(args[0])
                start = 1
                if op.startswith(("v_add_co", "v_sub_co", "v_addc_co", "v_subb_co")):
                    self.wr |= R(args[1]); start = 2
                for a in args[start:]: self.rd |= R(a)
                if op.startswith(("v_fmac", "v_dot2c", "v_pk_fmac", "v_mac")) or self.dpp:
                    self.rd |= R(args[0])
            if op.split("_e32")[0].split("_e64")[0] in TRANS: self.kind = "trans"
        elif op.startswith("ds_"):
            self.kind = "ds"
            if op.startswith(("ds_read", "ds_bpermute", "ds_permute", "ds_swizzle")) or "_rtn" in op:
                self.wr = R(args[0])
                for a in args[1:]: self.rd |= R(a)
            else:
                for a in args: self.rd |= R(a)
        elif op.startswith(("buffer_", "global_")):
            self.kind = "vmem"
            islds = (" lds" in (" " + mods)) or op.startswith("global_load_lds")
            if op.startswith(("buffer_inv", "buffer_wbl2")):
                pass
            elif islds:
                self.lds_dma = True
                for a in args: self.rd |= R(a)
                self.rd |= {("s", "m0")}
            elif "_load" in op:
                self.wr = R(args[0])
                for a in args[1:]: self.rd |= R(a)
            elif "_store" in op:
                if op.startswith("buffer"):
                    self.store_data = R(args[0]) if ("x3" in op or "x4" in op) else set()
                for a in args: self.rd |= R(a)
            elif "_atomic" in op:
                for a in args: self.rd |= R(a)
                if "sc0" in mods: self.wr = R(args[0])
        elif op == "s_nop":
            self.kind = "nop"; self.nop = int(args[0], 0) + 1
        elif op.startswith(("s_branch", "s_cbranch")):
            self.kind = "branch"; self.target = args[0]
        elif op.startswith("s_"):
            self.kind = "salu"
            if op.startswith(("s_cmp", "s_waitcnt", "s_barrier", "s_sleep", "s_setprio", "s_endpgm", "s_bitcmp")):
                for a in args: self.rd |= R(a)
            elif op.startswith("s_load") or op.startswith("s_memtime") or op.startswith("s_memrealtime"):
                self.kind = "smem"; self.wr = R(args[0])
                for a in args[1:]: self.rd |= R(a)
            else:
                self.wr = R(args[0])
                for a in args[1:]: self.rd |= R(a)
                if "saveexec" in op: self.wr |= R("exec")
        else:
            raise ValueError("unknown instr " + text)

def isv(s): return {r for r in s if r[0] in ("v", "a")}
def iss(s): return {r for r in s if r[0] == "s"}

XDL_D_AB = {2: 5, 4: 8, 8: 12, 16: 20}
XDL_D_VALU = {2: 5, 4: 8, 8: 12, 16: 20}
XDL_D_COVL = {2: 4, 4: 6, 8: 10, 16: 18}
SG_D_VALU = {2: 4, 4: 6, 8: 10, 16: 18}
SG_D_COVL = {2: 2, 4: 4, 8: 8, 16: 16}
XDL_C_WAR = {2: 1, 4: 3, 8: 7, 16: 15}

def need(P, C):
    n = 0
    pk, ck = P.kind, C.kind
    VAL = ("valu", "trans", "permlane", "readlane")
    if pk in VAL:
        pw = isv(P.wr); psw = iss(P.wr)
        if ck in ("mfma", "sgemm") and pw & isv(C.rd): n = max(n, 2)
        if ck == "permlane" and pw & C.rd: n = max(n, 2)
        if ck == "readlane" and pw & isv(C.rd): n = max(n, 1)
        if C.dpp and pw & isv(C.rd): n = max(n, 2)
        if pk == "trans" and ck in ("valu", "permlane", "readlane", "mfma", "sgemm") and pw & isv(C.rd): n = max(n, 1)
        if pk == "trans" and ck in ("vmem", "ds") and pw & isv(C.rd): n = max(n, 1)
        if psw:
            if ck in VAL and psw & iss(C.rd): n = max(n, 2 if ck != "readlane" else 4)
            if ck == "vmem" and psw & iss(C.rd): n = max(n, 5)
            if ck in ("salu", "branch", "smem") and psw & iss(C.rd): n = max(n, 1)
            if ck in ("mfma", "sgemm") and (("s", "exec_lo") in psw): n = max(n, 4)
    if pk == "mfma":
        D = P.wr; p = P.passes
        if ck in ("mfma", "sgemm"):
            if D & C.srcAB: n = max(n, XDL_D_AB[p])
            if D & C.srcC:
                if ck == "mfma" and C.srcC == D and C.passes == p: n = max(n, 2 if p == 2 else 0)
                else: n = max(n, XDL_D_COVL[p])
            if (D & C.wr) and not (C.srcC == D): n = max(n, XDL_D_COVL[p])
        elif ck in VAL or ck in ("vmem", "ds"):
            if D & (isv(C.rd) | isv(C.wr)): n = max(n, XDL_D_VALU[p])
        if ck in VAL and (P.srcC & isv(C.wr)): n = max(n, XDL_C_WAR[p])
    if pk == "sgemm":
        D = P.wr; p = P.passes
        if ck in ("mfma", "sgemm"):
            if D & C.srcAB: n = max(n, SG_D_VALU[p])
            if D & C.srcC:
                if ck == "sgemm": n = max(n, 0 if C.srcC == D else SG_D_COVL[p])
            if (D & C.wr) and not (C.srcC == D): n = max(n, SG_D_VALU[p])
        elif ck in VAL or ck in ("vmem", "ds"):
            if D & (isv(C.rd) | isv(C.wr)): n = max(n, SG_D_VALU[p])
    if pk == "vmem" and P.store_data:
        if ck in VAL and (P.store_data & isv(C.wr)): n = max(n, 2)
        elif (P.store_data & isv(C.wr)): n = max(n, 1)
    if pk == "salu" and ("s", "m0") in P.wr and C.lds_dma: n = max(n, 1)
    if pk == "salu" and ("s", "exec_lo") in P.wr and ck in ("mfma", "sgemm"): n = max(n, 1)
    return n

MAXD = 21

def width(i):
    if i.kind in ("none", "label"): return 0
    if i.kind == "nop": return i.nop
    return 1

def fix(lines, verbose=False):
    ins = [Ins(l) for l in lines]
    total_nops = 0
    changed = True
    it = 0
    while changed:
        changed = False; it += 1
        labels = {x.label: k for k, x in enumerate(ins) if x.kind == "label"}
        k = 0
        while k < len(ins):
            C = ins[k]
            if C.kind in ("none", "label", "nop"):
                k += 1; continue
            req = 0
            stack = [(k - 1, 0)]
            seen = {}
            while stack:
                j, dist = stack.pop()
                while j >= 0 and dist < MAXD:
                    if j in seen and seen[j] <= dist: break
                    seen[j] = dist
                    P = ins[j]
                    if P.kind == "label":
                        for bi, b in enumerate(ins):
                            if b.kind == "branch" and b.target == P.label:
                                stack.append((bi, dist))
                        j -= 1; continue
                    if P.kind == "branch" and P.op == "s_branch" and j != k - 1 and False:
                        break
                    if P.op in ("s_endpgm",): break
                    if P.kind == "branch" and P.op == "s_branch" and (j + 1 < len(ins)) and seen.get("start") is None:
                        pass
                    nn = need(P, C)
                    if nn > dist: req = max(req, nn - dist)
                    dist += width(P)
                    j -= 1
                    if j >= 0 and ins[j].kind == "branch" and ins[j].op == "s_branch" and ins[j + 1].kind == "label":
                        break
            if req > 0:
                n = req
                new = []
                while n > 0:
                    c = min(n, 16); new.append(Ins(f"    s_nop {c-1}")); n -= c
                ins[k:k] = new
                total_nops += req
                k += len(new)
                changed = True
                labels = None
            k += 1
        if it > 5: break
    if verbose: print("hazard: inserted", total_nops, "wait states")
    return [x.text for x in ins]
```

```python
import sys, math, struct
from asmlib import *
import hazard

def f2u(x): return struct.unpack("<I", struct.pack("<f", x))[0]

NHELP = 16; NWORK = 224; NWG = NHELP + NWORK
WREG = 0; FREG = 73728; FLG = 159744; DUMMY = 160768
CNT0 = FLG
CNTA = FLG + 16
CNTW = FLG + 20
WS_A = 0; WS_PART = 0x10000; WS_DBG = 0x400000; WS_STAMP = 0x800000
LOG2E = 1.4426950408889634
THR = 8.0

class G:
    def __init__(self, opts):
        self.a = Asm(); self.o = opts
    def __call__(self, s): self.a(s)

def srd(a, base, ptr, size):
    a(f"s_mov_b32 s{base}, s{ptr}\ns_mov_b32 s{base+1}, s{ptr+1}\ns_mov_b32 s{base+2}, {size}\ns_mov_b32 s{base+3}, 0x00020000")

P_Q, P_FHI, P_FLO, P_WLAT, P_WQ, P_WK, P_WV, P_WO, P_WM, P_OUT, P_DBG, P_WS = 16, 18, 20, 22, 24, 26, 28, 30, 32, 34, 36, 38
S_FHI, S_FLO, S_WLAT, S_WV, S_WS, S_DBG, S_Q, S_WQ, S_WK, S_WM, S_WO, S_OUT = 40, 44, 48, 52, 56, 60, 64, 68, 72, 76, 80, 84

def stamp(a, o, idx, nst=8):
    if not o.get("stamps"): return
    a(f"""
    s_memrealtime s[96:97]
    s_lshl_b32 s98, s2, 3
    s_add_u32 s98, s98, s3
    s_mul_i32 s98, s98, {nst*8}
    s_add_u32 s98, s98, {WS_STAMP + idx*8}
    s_waitcnt lgkmcnt(0)
    v_mov_b32 v254, s96
    v_mov_b32 v255, s97
    v_mov_b32 v253, 0
    s_mov_b64 s[96:97], exec
    s_mov_b64 exec, 1
    buffer_store_dwordx2 v[254:255], v253, s[{S_WS}:{S_WS+3}], s98 offen
    s_mov_b64 exec, s[96:97]
    """)

def div24(a, dst_q, dst_r, idx, tmp):
    a(f"""
    v_mul_u32_u24 v{dst_q}, 2731, v{idx}
    v_lshrrev_b32 v{dst_q}, 16, v{dst_q}
    v_mul_u32_u24 v{tmp}, 24, v{dst_q}
    v_sub_u32 v{dst_r}, v{idx}, v{tmp}
    """)

def gen_helper(a, o):
    WQ = 0; WM = 18432; WO = 40960; RED = WO + 73728
    a("L_helper:")
    a("""
    v_and_b32 v1, 63, v0
    v_lshrrev_b32 v2, 4, v1          ; g
    v_and_b32 v3, 15, v1             ; j / i
    s_lshr_b32 s4, s2, 2             ; h
    s_and_b32 s5, s2, 3              ; cg
    v_lshlrev_b32 v4, 4, v1          ; lane*16
    ; WM dma lane offsets: m=0..2: idx=64m+lane ; row=idx/6 ; u=idx%6 ; off=row*384+16u
    """)
    for m in range(3):
        a(f"""
        v_add_u32 v5, {64*m}, v1
        v_mul_u32_u24 v6, 10923, v5
        v_lshrrev_b32 v6, 16, v6
        v_mul_u32_u24 v7, 6, v6
        v_sub_u32 v7, v5, v7
        v_mul_u32_u24 v6, 384, v6
        v_lshlrev_b32 v7, 4, v7
        v_add_u32 v{8+m}, v6, v7
        """)
    a("s_waitcnt lgkmcnt(0)")
    srd(a, S_WQ, P_WQ, 73728); srd(a, S_WM, P_WM, 73728); srd(a, S_Q, P_Q, 6144); srd(a, S_WK, P_WK, 73728)
    srd(a, S_WS, P_WS, 0x10000000); srd(a, S_DBG, P_DBG, 256); srd(a, S_WO, P_WO, 73728); srd(a, S_OUT, P_OUT, 6144)
    stamp(a, o, 0)
    a("""
    s_cmp_ge_u32 s3, 3
    s_cbranch_scc1 L_h_notwq
    s_mul_i32 s6, s4, 18432
    s_mul_i32 s7, s3, 6144
    s_add_u32 s6, s6, s7
    """)
    for k in range(6):
        a(f"""
        s_add_u32 m0, s7, {WQ + 1024*k}
        s_add_u32 s8, s6, {1024*k}
        buffer_load_dwordx4 v4, s[{S_WQ}:{S_WQ+3}], s8 offen lds
        """)
    a(f"""
    v_mul_u32_u24 v12, 384, v3
    v_lshlrev_b32 v13, 4, v2
    v_add_u32 v12, v12, v13
    """)
    for s in range(6):
        a(f"buffer_load_dwordx4 v[{16+4*s}:{19+4*s}], v12, s[{S_Q}:{S_Q+3}], 0 offen offset:{64*s}")
    a(f"""
    s_mul_i32 s6, s4, 18432
    s_mul_i32 s8, s5, {48*96}
    s_add_u32 s6, s6, s8
    s_mul_i32 s8, s3, {16*96}
    s_add_u32 s6, s6, s8
    v_mul_u32_u24 v14, 96, v3
    v_lshlrev_b32 v13, 3, v2
    v_add_u32 v14, v14, v13
    """)
    for dt in range(3):
        a(f"buffer_load_dwordx2 v[{40+2*dt}:{41+2*dt}], v14, s[{S_WK}:{S_WK+3}], s6 offen offset:{32*dt}")
    a("""
    s_branch L_h_dma2
    L_h_notwq:
    s_cmp_ge_u32 s3, 6
    s_cbranch_scc1 L_h_dma2
    s_sub_u32 s7, s3, 3              ; 0..2
    s_mul_i32 s6, s7, 24576
    s_mul_i32 s8, s5, 96
    s_add_u32 s6, s6, s8
    s_mul_i32 s7, s7, 6144
    """)
    for gq in range(2):
        for m in range(3):
            a(f"""
            s_add_u32 m0, s7, {WM + 3072*gq + 1024*m}
            s_add_u32 s8, s6, {12288*gq}
            buffer_load_dwordx4 v{8+m}, s[{S_WM}:{S_WM+3}], s8 offen lds
            """)
    a("L_h_dma2:")
    a("s_waitcnt vmcnt(0)\ns_barrier")
    stamp(a, o, 1)
    a("s_mul_i32 s7, s3, 9216")
    for k in range(9):
        a(f"""
        s_add_u32 m0, s7, {WO + 1024*k}
        s_add_u32 s8, s7, {1024*k}
        buffer_load_dwordx4 v4, s[{S_WO}:{S_WO+3}], s8 offen lds
        """)
    a("""
    s_cmp_ge_u32 s3, 3
    s_cbranch_scc1 L_h_wait
    """)
    a(f"""
    v_lshrrev_b32 v5, 2, v3          ; rr
    v_and_b32 v6, 3, v3              ; cc
    v_lshlrev_b32 v7, 3, v2
    v_add_u32 v7, v7, v5             ; 8g+rr
    v_mul_u32_u24 v7, 96, v7
    v_lshlrev_b32 v6, 3, v6
    v_add_u32 v7, v7, v6             ; lane addr within WQ (row*96 + 8cc)
    s_lshl_b32 s8, s3, 5             ; 32*cs
    v_add_u32 v15, s8, v7
    v_add_u32 v15, {WM}, v15
    """)
    QT = 48; FB = 64; ME = 60
    seq = [(dt, s) for dt in range(3) for s in range(6)]
    def rd(k, dst):
        dt, s = seq[k]
        a(f"ds_read_b64_tr_b16 v[{dst}:{dst+1}], v7 offset:{WQ + s*3072 + 32*dt}")
        a(f"ds_read_b64_tr_b16 v[{dst+2}:{dst+3}], v7 offset:{WQ + s*3072 + 384 + 32*dt}")
    for k in range(4): rd(k, FB + 4*k)
    for k in range(18):
        dt, s = seq[k]
        out = min(3, 17 - k)
        a(f"s_waitcnt lgkmcnt({2*out})")
        b = FB + 4*(k % 4)
        c = "0" if s == 0 else f"v[{QT+4*dt}:{QT+4*dt+3}]"
        a(f"v_mfma_f32_16x16x32_bf16 v[{QT+4*dt}:{QT+4*dt+3}], v[{b}:{b+3}], v[{16+4*s}:{19+4*s}], {c}")
        if k + 4 < 18: rd(k + 4, b)
    def rdm(s, dst):
        a(f"ds_read_b64_tr_b16 v[{dst}:{dst+1}], v15 offset:{s*3072}")
        a(f"ds_read_b64_tr_b16 v[{dst+2}:{dst+3}], v15 offset:{s*3072 + 384}")
    FM = 80
    for s in range(6): rdm(s, FM + 4*s)
    for s in range(6):
        a(f"s_waitcnt lgkmcnt({2*(5-s)})")
        c = "0" if s == 0 else f"v[{ME}:{ME+3}]"
        a(f"v_mfma_f32_16x16x32_bf16 v[{ME}:{ME+3}], v[{FM+4*s}:{FM+4*s+3}], v[{16+4*s}:{19+4*s}], {c}")
    QB = 104
    for dt in range(3):
        a(f"v_cvt_pk_bf16_f32 v{QB+2*dt}, v{QT+4*dt}, v{QT+4*dt+1}")
        a(f"v_cvt_pk_bf16_f32 v{QB+2*dt+1}, v{QT+4*dt+2}, v{QT+4*dt+3}")
    QK = 112
    for dt in range(3):
        c = "0" if dt == 0 else f"v[{QK}:{QK+3}]"
        a(f"v_mfma_f32_16x16x16_bf16 v[{QK}:{QK+3}], v[{40+2*dt}:{41+2*dt}], v[{QB+2*dt}:{QB+2*dt+1}], {c}")
    s1 = LOG2E / math.sqrt(48.0); s2 = LOG2E / math.sqrt(192.0)
    a(f"s_mov_b32 s8, {hex(f2u(s1))}\ns_mov_b32 s9, {hex(f2u(s2))}")
    for r in range(4):
        a(f"v_mul_f32 v{ME+r}, s9, v{ME+r}")
    for r in range(4):
        a(f"v_fma_f32 v{ME+r}, v{QK+r}, s8, v{ME+r}")
    a(f"v_cvt_pk_bf16_f32 v116, v{ME}, v{ME+1}\nv_cvt_pk_bf16_f32 v117, v{ME+2}, v{ME+3}")
    a(f"""
    v_lshrrev_b32 v5, 1, v2          ; g4>>1
    v_and_b32 v6, 1, v2
    v_xor_b32 v6, v6, v5
    v_lshlrev_b32 v6, 3, v6          ; 8*(..)
    v_lshlrev_b32 v5, 9, v5          ; 32*16*(g4>>1)
    v_lshlrev_b32 v7, 4, v3          ; q*16
    v_add3_u32 v5, v5, v6, v7
    s_lshr_b32 s8, s4, 1             ; hp
    s_mul_i32 s8, s8, 12
    s_mul_i32 s9, s5, 3
    s_add_u32 s8, s8, s9
    s_add_u32 s8, s8, s3             ; hp*12+ks
    s_lshl_b32 s8, s8, 10
    s_and_b32 s9, s4, 1
    s_lshl_b32 s9, s9, 8
    s_add_u32 s8, s8, s9
    s_add_u32 s8, s8, {WS_A}
    buffer_store_dwordx2 v[116:117], v5, s[{S_WS}:{S_WS+3}], s8 offen sc1
    L_h_wait:
    s_waitcnt vmcnt(0)
    s_barrier
    """)
    a(f"""
    s_cmp_lg_u32 s3, 0
    s_cbranch_scc1 L_h_flagdone
    v_mov_b32 v5, 1
    v_mov_b32 v6, s2
    s_mov_b64 exec, 1
    buffer_store_byte v5, v6, s[{S_DBG}:{S_DBG+3}], 0 offen sc1
    s_mov_b64 exec, -1
    L_h_flagdone:
    """)
    stamp(a, o, 2)
    gen_reducer(a, o, WO, RED)

def gen_reducer(a, o, WO, RED):
    if o.get("stage", 9) < 4:
        a("s_branch L_end"); return
    BO = 180
    a(f"""
    v_lshrrev_b32 v5, 2, v3
    v_and_b32 v6, 3, v3
    v_lshlrev_b32 v7, 3, v2
    v_add_u32 v7, v7, v5
    v_mul_u32_u24 v7, 384, v7
    v_lshlrev_b32 v6, 3, v6
    v_add_u32 v7, v7, v6
    s_lshl_b32 s8, s3, 6             ; 2 tiles * 32 B
    v_add_u32 v7, s8, v7
    v_add_u32 v7, {WO}, v7
    s_cmp_ge_u32 s3, 6
    s_cbranch_scc1 L_r_nopre
    """)
    cnt = 0
    for nt in range(2):
        for s in range(6):
            b = BO + 4*(nt*6 + s)
            a(f"ds_read_b64_tr_b16 v[{b}:{b+1}], v7 offset:{s*12288 + 32*nt}")
            a(f"ds_read_b64_tr_b16 v[{b+2}:{b+3}], v7 offset:{s*12288 + 1536 + 32*nt}")
            cnt += 2
            if cnt % 12 == 0: a("s_waitcnt lgkmcnt(0)")
    a(f"""
    s_mul_i32 s8, s2, 384
    s_lshl_b32 s9, s3, 6
    s_add_u32 s8, s8, s9
    v_lshlrev_b32 v8, 1, v3
    buffer_load_ushort v176, v8, s[{S_Q}:{S_Q+3}], s8 offen
    buffer_load_ushort v177, v8, s[{S_Q}:{S_Q+3}], s8 offen offset:32
    L_r_nopre:
    """)
    a(f"""
    v_lshlrev_b32 v9, 2, v1
    v_add_u32 v9, 16, v9
    v_cmp_gt_u32 vcc, 56, v1
    s_mov_b64 s[10:11], vcc
    s_mov_b32 s12, 0x01010101
    s_mov_b32 s13, 0
    L_r_poll:
    buffer_load_dword v10, v9, s[{S_DBG}:{S_DBG+3}], 0 offen sc1
    s_waitcnt vmcnt(0)
    v_cmp_ne_u32 vcc, s12, v10
    s_and_b64 vcc, vcc, s[10:11]
    s_cbranch_vccz L_r_go
    s_sleep 2
    s_add_u32 s13, s13, 1
    s_cmp_lt_u32 s13, 0x10000
    s_cbranch_scc1 L_r_poll
    L_r_go:
    """)
    stamp(a, o, 3)
    RB = 16
    a(f"""
    s_mul_i32 s8, s2, 224
    s_mul_i32 s9, s3, 28
    s_add_u32 s8, s8, s9
    s_lshl_b32 s8, s8, 9
    s_add_u32 s8, s8, {WS_PART}
    """)
    for i in range(14):
        if i % 4 == 0 and i > 0: a("s_add_u32 s8, s8, 4096")
        a(f"buffer_load_dwordx4 v[{RB+4*i}:{RB+4*i+3}], v4, s[{S_WS}:{S_WS+3}], s8 offen offset:{1024*(i%4)} sc1")
    a("s_waitcnt vmcnt(0)")
    stamp(a, o, 4)
    MX = 80; DEN = 81; ACC = 82
    a(f"v_max_f32 v{MX}, v{RB+3}, v{RB+7}")
    for i in range(2, 14, 2):
        a(f"v_max3_f32 v{MX}, v{MX}, v{RB+4*i+3}, v{RB+4*i+7}")
    a(f"""
    v_mov_b32 v88, v{MX}
    s_nop 1
    v_permlane32_swap_b32 v88, v{MX}
    s_nop 1
    v_max_f32 v{MX}, v{MX}, v88
    v_lshlrev_b32 v89, 2, v1
    s_lshl_b32 s9, s3, 8
    v_add_u32 v89, s9, v89
    v_add_u32 v89, {RED}, v89
    ds_write_b32 v89, v{MX}
    s_waitcnt lgkmcnt(0)
    s_barrier
    v_lshlrev_b32 v89, 2, v1
    v_add_u32 v89, {RED}, v89
    """)
    for w in range(8):
        a(f"ds_read_b32 v{90+w}, v89 offset:{256*w}")
    a("s_waitcnt lgkmcnt(0)")
    a(f"v_max3_f32 v{MX}, v90, v91, v92\nv_max3_f32 v{MX}, v{MX}, v93, v94\nv_max3_f32 v{MX}, v{MX}, v95, v96\nv_max_f32 v{MX}, v{MX}, v97")
    for i in range(14):
        a(f"v_sub_f32 v{RB+4*i+3}, v{RB+4*i+3}, v{MX}")
    for i in range(14):
        a(f"v_exp_f32 v{RB+4*i+3}, v{RB+4*i+3}")
    a(f"v_mov_b32 v{DEN}, 0")
    for x in range(6): a(f"v_mov_b32 v{ACC+x}, 0")
    for i in range(14):
        e = RB+4*i+3
        a(f"v_add_f32 v{DEN}, v{DEN}, v{e}")
        for d in range(3):
            src = RB+4*i+d
            a(f"v_lshlrev_b32 v98, 16, v{src}")
            a(f"v_and_b32 v99, 0xffff0000, v{src}")
            a(f"v_fmac_f32 v{ACC+2*d}, v98, v{e}")
            a(f"v_fmac_f32 v{ACC+2*d+1}, v99, v{e}")
    RED2 = RED + 2048
    a(f"""
    v_mov_b32 v{ACC+6}, v{DEN}
    v_lshlrev_b32 v89, 5, v1
    s_lshl_b32 s9, s3, 11
    v_add_u32 v89, s9, v89
    v_add_u32 v89, {RED2}, v89
    ds_write_b128 v89, v[{ACC}:{ACC+3}]
    ds_write_b128 v89, v[{ACC+4}:{ACC+7}] offset:16
    s_waitcnt lgkmcnt(0)
    s_barrier
    """)
    CTX = RED2 + 16384
    a(f"""
    s_cmp_ge_u32 s3, 3
    s_cbranch_scc1 L_r_b3
    v_mul_u32_u24 v90, 10923, v0
    v_lshrrev_b32 v90, 16, v90        ; hc = t/6  (t<192)
    v_mul_u32_u24 v91, 6, v90
    v_sub_u32 v91, v0, v91            ; x
    v_lshlrev_b32 v92, 5, v90         ; hc*32
    v_lshlrev_b32 v93, 2, v91
    v_add_u32 v93, v92, v93
    v_add_u32 v93, {RED2}, v93
    v_add_u32 v92, {RED2+24}, v92
    """)
    for k in range(16):
        a(f"ds_read_b32 v{100+k}, v93 offset:{1024*k}")
        if k == 7: a("s_waitcnt lgkmcnt(0)")
    a("s_waitcnt lgkmcnt(0)")
    for k in range(16):
        a(f"ds_read_b32 v{116+k}, v92 offset:{1024*k}")
        if k == 7: a("s_waitcnt lgkmcnt(0)")
    a("s_waitcnt lgkmcnt(0)")
    for k in range(1, 16):
        a(f"v_add_f32 v100, v100, v{100+k}")
        a(f"v_add_f32 v116, v116, v{116+k}")
    a(f"""
    v_rcp_f32 v116, v116
    s_nop 0
    v_mul_f32 v100, v100, v116
    v_cvt_pk_bf16_f32 v100, v100, v100
    v_lshlrev_b32 v101, 1, v0
    v_add_u32 v101, {CTX}, v101
    ds_write_b16 v101, v100
    L_r_b3:
    s_waitcnt lgkmcnt(0)
    s_barrier
    s_cmp_ge_u32 s3, 6
    s_cbranch_scc1 L_end
    v_lshlrev_b32 v90, 4, v2
    v_add_u32 v90, {CTX}, v90
    """)
    for s in range(6):
        a(f"ds_read_b128 v[{16+4*s}:{19+4*s}], v90 offset:{64*s}")
    a("s_waitcnt lgkmcnt(0)")
    for nt in range(2):
        for s in range(6):
            b = BO + 4*(nt*6 + s)
            d = 48 + 4*nt
            c = "0" if s == 0 else f"v[{d}:{d+3}]"
            a(f"v_mfma_f32_16x16x32_bf16 v[{d}:{d+3}], v[{16+4*s}:{19+4*s}], v[{b}:{b+3}], {c}")
    a(f"""
    s_waitcnt vmcnt(0)
    v_cvt_pk_bf16_f32 v56, v48, v52
    v_lshlrev_b32 v57, 16, v56
    v_and_b32 v58, 0xffff0000, v56
    v_lshlrev_b32 v176, 16, v176
    v_lshlrev_b32 v177, 16, v177
    v_add_f32 v57, v57, v176
    v_add_f32 v58, v58, v177
    v_cvt_pk_bf16_f32 v57, v57, v57
    v_cvt_pk_bf16_f32 v58, v58, v58
    s_mul_i32 s8, s2, 384
    s_lshl_b32 s9, s3, 6
    s_add_u32 s8, s8, s9
    s_mov_b64 exec, 0xffff
    buffer_store_short v57, v8, s[{S_OUT}:{S_OUT+3}], s8 offen
    buffer_store_short v58, v8, s[{S_OUT}:{S_OUT+3}], s8 offen offset:32
    s_mov_b64 exec, -1
    """)
    stamp(a, o, 5)
    a("s_branch L_end")

def gen_producer(a, o):
    a("L_producer:")
    a("""
    v_and_b32 v1, 63, v0
    v_lshrrev_b32 v2, 4, v1          ; g
    v_and_b32 v3, 15, v1             ; j
    """)
    for m in range(3):
        a(f"v_add_u32 v20, {64*m}, v1")
        div24(a, 21, 22, 20, 23)
        a(f"""
        v_and_b32 v23, 1, v21                 ; b0
        v_lshlrev_b32 v24, 1, v21
        v_and_b32 v24, 4, v24                 ; b1<<2
        v_or_b32 v23, v23, v24
        v_lshrrev_b32 v24, 1, v21
        v_and_b32 v24, 2, v24                 ; b2<<1
        v_or_b32 v23, v23, v24                ; sw
        v_xor_b32 v22, v22, v23
        v_lshlrev_b32 v22, 4, v22
        v_mul_u32_u24 v23, 768, v21
        v_add_u32 v{4+m}, v23, v22
        v_xor_b32 v{7+m}, 16, v{4+m}
        v_mul_u32_u24 v23, 384, v21
        v_add_u32 v{10+m}, v23, v22
        v_xor_b32 v{13+m}, 16, v{10+m}
        """)
    a(f"""
    s_lshr_b32 s4, s15, 1            ; y'
    s_and_b32 s5, s15, 1             ; xh
    s_mul_i32 s6, s4, 172032
    s_mul_i32 s7, s5, 43008
    s_add_u32 s6, s6, s7
    s_mul_i32 s7, s3, 12288
    s_add_u32 s6, s6, s7             ; s6 = f_hi base offset (dy=0,dx=0)
    s_mul_i32 s7, s15, 21504
    s_mul_i32 s8, s3, 6144
    s_add_u32 s7, s7, s8
    s_add_u32 s8, s8, {FREG}
    s_cmp_eq_u32 s3, 3
    s_cselect_b32 s9, {DUMMY - 3072}, s8
    s_cselect_b32 s10, 0, 21504
    s_cselect_b32 s12, 1, -1
    s_cselect_b32 s13, 0, -1
    s_waitcnt lgkmcnt(0)
    """)
    srd(a, S_FLO, P_FLO, 4816896); srd(a, S_FHI, P_FHI, 19267584)
    def dma_block(i, kind):
        odd = i & 1
        for half in range(2):
            if half == 1: a("s_mov_b64 exec, s[12:13]")
            for m in range(3):
                useB = (odd ^ half)
                if kind == "hi":
                    vr_ = (7 if useB else 4) + m; S = S_FHI
                    goff = (i >> 1) * 86016 + (i & 1) * 384 + half * 6144; sb = "s6"
                else:
                    vr_ = (13 if useB else 10) + m; S = S_FLO
                    goff = half * 3072; sb = "s7"
                if half == 0:
                    a(f"s_add_u32 m0, s8, {21504*i + 1024*m}")
                else:
                    if i == 0: a(f"s_add_u32 m0, s9, {3072 + 1024*m}")
                    else:
                        a(f"s_mul_i32 s11, s10, {i}\ns_add_u32 s11, s11, s9\ns_add_u32 m0, s11, {3072 + 1024*m}")
                a(f"s_add_u32 s11, {sb}, {goff}")
                a(f"buffer_load_dwordx4 v{vr_}, s[{S}:{S+3}], s11 offen lds")
            if half == 1: a("s_mov_b64 exec, -1")
    dma_block(3, "lo")
    for i in range(3): dma_block(i, "hi")
    srd(a, S_WS, P_WS, 0x10000000)
    stamp(a, o, 0)
    a(f"""
    s_cmp_eq_u32 s3, 3
    s_cselect_b32 s11, 7, 15
    v_and_b32 v20, s11, v3                ; j'
    v_and_b32 v23, 1, v20                 ; b0
    v_lshrrev_b32 v24, 3, v20             ; b3 (i even)
    v_xor_b32 v23, v23, v24
    v_lshlrev_b32 v24, 1, v20
    v_and_b32 v24, 4, v24
    v_or_b32 v23, v23, v24
    v_lshrrev_b32 v24, 1, v20
    v_and_b32 v24, 2, v24
    v_or_b32 v23, v23, v24
    v_xor_b32 v23, v23, v2                ; g ^ sw
    v_lshlrev_b32 v23, 4, v23
    v_mul_u32_u24 v24, 384, v20
    v_add_u32 v23, v23, v24
    v_add_u32 v16, s8, v23
    v_xor_b32 v17, 64, v16                ; X1
    v_xor_b32 v18, 16, v16
    v_add_u32 v18, {3*21504}, v18
    v_xor_b32 v19, 64, v18
    """)
    a(f"""
    v_lshrrev_b32 v20, 2, v3              ; i>>2
    v_cmp_eq_u32 vcc, v20, v2             ; active
    v_and_b32 v21, 3, v3                  ; i&3
    v_and_b32 v22, 1, v2                  ; g&1
    v_and_b32 v23, 1, v21
    v_mov_b32 v37, 0x3f80
    v_mov_b32 v38, 0x3f800000
    s_mov_b64 s[88:89], vcc
    v_cmp_eq_u32 vcc, 1, v23
    s_nop 1
    v_cndmask_b32 v37, v37, v38, vcc
    v_cndmask_b32 v37, 0, v37, s[88:89]
    v_lshrrev_b32 v21, 1, v21             ; (i&3)>>1
    """)
    for b in range(2):
        a(f"v_xor_b32 v23, {b}, v22\nv_lshlrev_b32 v23, 1, v23\nv_add_u32 v23, v23, v21")
        for rho in range(4):
            a(f"v_cmp_eq_u32 vcc, {rho}, v23\ns_nop 1\nv_cndmask_b32 v{24+4*b+rho}, 0, v37, vcc")
    for r in range(4): a(f"v_mov_b32 v{32+r}, 0x3f803f80")
    a("v_mov_b32 v36, 1.0")
    a(f"""
    v_lshrrev_b32 v20, 2, v3              ; rr
    v_and_b32 v21, 3, v3                  ; cc
    v_lshlrev_b32 v22, 3, v2
    v_add_u32 v22, v22, v20               ; 8g+rr
    v_mul_u32_u24 v22, 384, v22
    v_lshrrev_b32 v23, 1, v20             ; bit1(rr)
    v_lshlrev_b32 v23, 2, v23             ; sw2<<2
    v_and_b32 v37, 1, v2
    v_xor_b32 v37, v37, v21               ; cc ^ (g&1)
    v_or_b32 v23, v23, v37
    v_lshlrev_b32 v23, 4, v23
    v_and_b32 v37, 1, v21
    v_lshlrev_b32 v37, 3, v37
    v_add3_u32 v40, v22, v23, v37
    v_xor_b32 v41, 8, v40                 ; b=1
    v_xor_b32 v42, 64, v40                ; T odd
    v_xor_b32 v43, 72, v40
    """)
    FLOF = 48
    LAT = 72
    WB = 120
    a("s_waitcnt vmcnt(18)")
    for s in range(6):
        a(f"ds_read_b128 v[{FLOF+4*s}:{FLOF+4*s+3}], v{18 + (s&1)} offset:{128*(s>>1)}")
    a("s_waitcnt lgkmcnt(0)")
    dma_block(3, "hi")
    stamp(a, o, 1)
    a("s_barrier")
    stamp(a, o, 2)
    seq = [(t, s) for t in range(12) for s in range(6)]
    def rdw(k, dst):
        t, s = seq[k]; T = t >> 1; b = t & 1
        vr_ = 40 + b + 2 * (T & 1)
        off = WREG + 128 * (T >> 1) + s * 12288
        a(f"ds_read_b64_tr_b16 v[{dst}:{dst+1}], v{vr_} offset:{off}")
        a(f"ds_read_b64_tr_b16 v[{dst+2}:{dst+3}], v{vr_} offset:{off + 1536}")
    for k in range(6): rdw(k, WB + 4*k)
    for k in range(72):
        t, s = seq[k]
        out = min(5, 71 - k)
        a(f"s_waitcnt lgkmcnt({2*out})")
        b = WB + 4 * (k % 6)
        c = "0" if s == 0 else f"v[{LAT+4*t}:{LAT+4*t+3}]"
        a(f"v_mfma_f32_16x16x32_bf16 v[{LAT+4*t}:{LAT+4*t+3}], v[{b}:{b+3}], v[{FLOF+4*s}:{FLOF+4*s+3}], {c}")
        if k + 6 < 72: rdw(k + 6, b)
    a(f"v_add_f32 v37, v{LAT}, v{LAT+1}")
    for r in range(2, 48): a(f"v_add_f32 v37, v37, v{LAT+r}")
    a("v_mfma_f32_16x16x4_f32 v[44:47], v36, v37, 0")
    stamp(a, o, 3)
    if o.get("dump_lat"):
        a(f"s_mul_i32 s11, s15, 4\ns_add_u32 s11, s11, s3\ns_mul_i32 s11, s11, {48*256}\ns_add_u32 s11, s11, {WS_DBG}\nv_lshlrev_b32 v20, 2, v1\ns_nop 15")
        for r in range(48):
            a(f"buffer_store_dword v{LAT+r}, v20, s[{S_WS}:{S_WS+3}], s11 offen\ns_add_u32 s11, s11, 256")
        a("s_waitcnt vmcnt(0)")
    RAW = 48
    D = 144
    PK = 192
    SUM = 216
    T2 = 220
    a("s_mov_b32 s14, 0")
    a(f"v_mov_b32 v38, {CNT0}")
    a("v_mov_b32 v39, 1")
    a("L_p_step:")
    a("""
    s_cmp_eq_u32 s14, 0
    s_cbranch_scc0 L_p_w1
    s_waitcnt vmcnt(18)
    s_branch L_p_go
    L_p_w1:
    s_cmp_eq_u32 s14, 1
    s_cbranch_scc0 L_p_w2
    s_waitcnt vmcnt(12)
    s_branch L_p_go
    L_p_w2:
    s_cmp_eq_u32 s14, 2
    s_cbranch_scc0 L_p_w3
    s_waitcnt vmcnt(6)
    s_branch L_p_go
    L_p_w3:
    s_waitcnt vmcnt(0)
    L_p_go:
    """)
    for s in range(6):
        a(f"ds_read_b128 v[{RAW+4*s}:{RAW+4*s+3}], v{16 + (s&1)} offset:{128*(s>>1)}")
    for s in range(6):
        a(f"s_waitcnt lgkmcnt({5-s})")
        c = "v[44:47]" if s == 0 else f"v[{SUM}:{SUM+3}]"
        a(f"v_mfma_f32_16x16x32_bf16 v[{SUM}:{SUM+3}], v[32:35], v[{RAW+4*s}:{RAW+4*s+3}], {c}")
        for b in range(2):
            t = 2*s + b
            a(f"v_mfma_f32_16x16x32_bf16 v[{D+4*t}:{D+4*t+3}], v[{24+4*b}:{27+4*b}], v[{RAW+4*s}:{RAW+4*s+3}], v[{LAT+4*t}:{LAT+4*t+3}]")
    a(f"v_mul_f32 v37, v{D}, v{D}")
    for r in range(1, 48): a(f"v_fmac_f32 v37, v{D+r}, v{D+r}")
    a(f"v_mfma_f32_16x16x4_f32 v[{T2}:{T2+3}], v36, v37, 0")
    a(f"""
    s_mov_b32 s11, {hex(f2u(1.0/192.0))}
    v_mul_f32 v224, s11, v{SUM}              ; mean
    v_mul_f32 v225, v224, v224
    v_fma_f32 v225, v{T2}, s11, -v225        ; var
    v_add_f32 v225, {hex(f2u(1e-5))}, v225
    v_rsq_f32 v225, v225                     ; rstd
    s_nop 0
    v_mul_f32 v226, v224, v225
    v_sub_f32 v226, 0, v226                  ; -mean*rstd
    """)
    for r in range(48): a(f"v_fma_f32 v{D+r}, v{D+r}, v225, v226")
    for s in range(6):
        for hh in range(4):
            t = 2*s + (hh >> 1); r = 2 * (hh & 1)
            a(f"v_cvt_pk_bf16_f32 v{PK+4*s+hh}, v{D+4*t+r}, v{D+4*t+r+1}")
        a(f"ds_write_b128 v{16 + (s&1)}, v[{PK+4*s}:{PK+4*s+3}] offset:{128*(s>>1)}")
    a(f"""
    s_mov_b64 exec, 1
    ds_add_u32 v38, v39
    s_mov_b64 exec, -1
    v_add_u32 v38, 4, v38
    v_xor_b32 v16, 16, v16
    v_add_u32 v16, 21504, v16
    v_xor_b32 v17, 64, v16
    s_add_u32 s14, s14, 1
    s_cmp_lt_u32 s14, 4
    s_cbranch_scc1 L_p_step
    """)
    stamp(a, o, 4)
    if o.get("stage", 9) >= 3:
        a("s_barrier\ns_barrier")
    else:
        a("s_waitcnt lgkmcnt(0)\ns_barrier")
        if o.get("dump_f"):
            a(f"v_lshlrev_b32 v20, 4, v1\ns_mul_i32 s11, s3, 21504\ns_add_u32 s11, s11, {FREG}\nv_add_u32 v21, s11, v20")
            a(f"s_mul_i32 s11, s15, 86016\ns_mul_i32 s10, s3, 21504\ns_add_u32 s11, s11, s10\ns_add_u32 s11, s11, {WS_DBG}")
            for k in range(21):
                a(f"ds_read_b128 v[48:51], v21 offset:{1024*k}\ns_waitcnt lgkmcnt(0)\nbuffer_store_dwordx4 v[48:51], v20, s[{S_WS}:{S_WS+3}], s11 offen\ns_add_u32 s11, s11, 1024\ns_waitcnt vmcnt(0)")
    a("s_branch L_end")

def gen_consumer(a, o):
    a("L_consumer:")
    a("""
    v_and_b32 v1, 63, v0
    s_sub_u32 s4, s3, 4              ; cw
    s_and_b32 s5, s4, 1              ; hp
    s_lshr_b32 s6, s4, 1             ; ph
    """)
    for m in range(3):
        a(f"v_add_u32 v20, {64*m}, v1")
        div24(a, 21, 22, 20, 23)
        a(f"""
        v_lshlrev_b32 v23, 1, v21
        v_and_b32 v23, 4, v23
        v_xor_b32 v22, v22, v23
        v_lshlrev_b32 v22, 4, v22
        v_mul_u32_u24 v23, 384, v21
        v_add_u32 v{4+m}, v23, v22
        v_xor_b32 v{7+m}, 16, v{4+m}
        """)
    a(f"""
    s_mul_i32 s7, s4, 18432
    s_waitcnt lgkmcnt(0)
    """)
    srd(a, S_WLAT, P_WLAT, 73728)
    for gq in range(3):
        for m in range(6):
            vr_ = (4 + m) if m < 3 else (7 + m - 3)
            extra = 0 if m < 3 else 3072
            a(f"""
            s_add_u32 m0, s7, {WREG + 6144*gq + 1024*m}
            s_add_u32 s8, s7, {6144*gq + extra}
            buffer_load_dwordx4 v{vr_}, s[{S_WLAT}:{S_WLAT+3}], s8 offen lds
            """)
    srd(a, S_WS, P_WS, 0x10000000); srd(a, S_DBG, P_DBG, 256); srd(a, S_WV, P_WV, 73728)
    stamp(a, o, 0)
    a(f"""
    s_cmp_lg_u32 s4, 0
    s_cbranch_scc1 L_c_noinit
    v_lshlrev_b32 v20, 2, v1
    v_add_u32 v20, {FLG}, v20
    v_mov_b32 v21, 0
    s_mov_b64 exec, 0xff
    ds_write_b32 v20, v21
    s_mov_b64 exec, -1
    L_c_noinit:
    """)
    a(f"""
    v_lshrrev_b32 v2, 5, v1               ; g
    v_and_b32 v3, 31, v1                  ; px
    v_and_b32 v20, 1, v3                  ; b0
    v_lshrrev_b32 v21, 3, v3
    v_and_b32 v21, 1, v21                 ; b3
    v_xor_b32 v20, v20, v21
    v_lshlrev_b32 v21, 1, v3
    v_and_b32 v21, 4, v21
    v_or_b32 v20, v20, v21
    v_lshrrev_b32 v21, 1, v3
    v_and_b32 v21, 2, v21
    v_or_b32 v20, v20, v21                ; sw
    v_xor_b32 v20, v20, v2
    v_lshlrev_b32 v20, 4, v20
    v_mul_u32_u24 v21, 384, v3
    v_add_u32 v20, v20, v21
    s_mul_i32 s8, s6, 12288
    s_add_u32 s8, s8, {FREG}
    v_add_u32 v8, s8, v20
    v_xor_b32 v9, 32, v8
    v_xor_b32 v10, 64, v8
    v_xor_b32 v11, 96, v8
    """)
    a(f"""
    v_lshrrev_b32 v20, 4, v1
    v_and_b32 v20, 1, v20                 ; ch
    v_lshrrev_b32 v21, 2, v1
    v_and_b32 v21, 3, v21                 ; rr
    v_and_b32 v22, 3, v1                  ; cc
    v_lshlrev_b32 v23, 2, v2
    v_add_u32 v23, v23, v21               ; 4g+rr
    v_mul_u32_u24 v23, 384, v23
    v_and_b32 v24, 1, v21                 ; b0
    v_lshlrev_b32 v25, 1, v21
    v_and_b32 v25, 4, v25                 ; b1<<2
    v_or_b32 v24, v24, v25
    v_lshlrev_b32 v25, 1, v2              ; b2<<1
    v_or_b32 v24, v24, v25                ; sw
    v_lshlrev_b32 v25, 1, v20
    v_lshrrev_b32 v26, 1, v22
    v_add_u32 v25, v25, v26
    v_xor_b32 v25, v25, v24
    v_lshlrev_b32 v25, 4, v25
    v_and_b32 v26, 1, v22
    v_lshlrev_b32 v26, 3, v26
    v_add3_u32 v23, v23, v25, v26
    v_add_u32 v12, s8, v23
    v_xor_b32 v13, 16, v12                ; sec=1
    v_xor_b32 v14, 64, v12
    v_xor_b32 v15, 80, v12
    """)
    AF = 32
    U = 80
    SA = 176
    NM = 192
    KB = 208
    TB = 224
    PP = 240
    LS = 16; MR = 17; TM = 18
    for r in range(96): a(f"v_mov_b32 v{U+r}, 0")
    for r in range(16): a(f"v_mov_b32 v{NM+r}, 0")
    a(f"v_mov_b32 v{LS}, 0\nv_mov_b32 v{MR}, 0")
    a("s_waitcnt vmcnt(0) lgkmcnt(0)\ns_barrier")
    stamp(a, o, 1)
    if o.get("stage", 9) < 3:
        a("s_barrier\ns_branch L_end"); return
    a(f"""
    v_mov_b32 v20, 0
    v_mov_b32 v21, {CNTA}
    s_mov_b32 s12, 0x01010101
    s_mov_b32 s13, 0
    s_cmp_lg_u32 s4, 0
    s_cbranch_scc1 L_c_spinA
    L_c_pollA:
    buffer_load_dwordx4 v[24:27], v20, s[{S_DBG}:{S_DBG+3}], 0 offen sc1
    s_waitcnt vmcnt(0)
    v_and_b32 v24, v24, v25
    v_and_b32 v26, v26, v27
    v_and_b32 v24, v24, v26
    s_nop 0
    v_readfirstlane_b32 s9, v24
    s_nop 1
    s_cmp_eq_u32 s9, s12
    s_cbranch_scc1 L_c_gotA
    s_sleep 4
    s_add_u32 s13, s13, 1
    s_cmp_lt_u32 s13, 0x10000
    s_cbranch_scc1 L_c_pollA
    L_c_gotA:
    v_mov_b32 v22, 1
    s_mov_b64 exec, 1
    ds_write_b32 v21, v22
    s_mov_b64 exec, -1
    s_branch L_c_haveA
    L_c_spinA:
    ds_read_b32 v22, v21
    s_waitcnt lgkmcnt(0)
    v_readfirstlane_b32 s9, v22
    s_nop 1
    s_cmp_eq_u32 s9, 1
    s_cbranch_scc1 L_c_haveA
    s_sleep 2
    s_add_u32 s13, s13, 1
    s_cmp_lt_u32 s13, 0x100000
    s_cbranch_scc1 L_c_spinA
    L_c_haveA:
    """)
    stamp(a, o, 2)
    a(f"v_lshlrev_b32 v20, 4, v1\ns_mul_i32 s9, s5, 12288\ns_add_u32 s9, s9, {WS_A}")
    for ks in range(12):
        if ks % 4 == 0 and ks > 0: a("s_add_u32 s9, s9, 4096")
        a(f"buffer_load_dwordx4 v[{AF+4*ks}:{AF+4*ks+3}], v20, s[{S_WS}:{S_WS+3}], s9 offen offset:{1024*(ks%4)} sc1")
    def wait_cnt(addr_reg_expr, lab, target=4):
        a(f"""
        {lab}:
        ds_read_b32 v22, v21
        s_waitcnt lgkmcnt(0)
        v_readfirstlane_b32 s9, v22
        s_nop 1
        s_cmp_ge_u32 s9, {target}
        s_cbranch_scc1 {lab}_ok
        s_sleep 1
        s_add_u32 s13, s13, 1
        s_cmp_lt_u32 s13, 0x100000
        s_cbranch_scc1 {lab}
        {lab}_ok:
        """)
    a(f"v_mov_b32 v21, {CNT0}")
    wait_cnt(None, "L_c_wlat")
    for k in range(18):
        a(f"""
        s_add_u32 m0, s7, {WREG + 1024*k}
        s_add_u32 s9, s7, {1024*k}
        buffer_load_dwordx4 v20, s[{S_WV}:{S_WV+3}], s9 offen lds
        """)
    a("s_waitcnt vmcnt(18)")
    stamp(a, o, 3)
    a(f"""
    s_mov_b32 s14, 0                 ; it
    s_sub_u32 s10, 4, s6             ; ntiles
    s_lshl_b32 s9, s6, 2
    s_add_u32 s9, s9, {CNT0}
    v_mov_b32 v21, s9
    L_c_tile:
    """)
    wait_cnt(None, "L_c_wt")
    def rds(ks, dst):
        a(f"ds_read_b128 v[{dst}:{dst+3}], v{8 + (ks & 3)} offset:{128 * (ks >> 2)}")
    for ks in range(4): rds(ks, KB + 4*ks)
    for ks in range(12):
        out = min(3, 11 - ks)
        a(f"s_waitcnt lgkmcnt({out})")
        b = KB + 4 * (ks % 4)
        c = f"v[{NM}:{NM+15}]" if ks == 0 else f"v[{SA}:{SA+15}]"
        a(f"v_mfma_f32_32x32x16_bf16 v[{SA}:{SA+15}], v[{b}:{b+3}], v[{AF+4*ks}:{AF+4*ks+3}], {c}")
        if ks + 4 < 12: rds(ks + 4, b)
    useq = [(ct, kap) for kap in range(2) for ct in range(6)]
    def rdu(k, dst):
        ct, kap = useq[k]
        off = 128 * (ct >> 1) + kap * 6144
        va = 12 + 2 * (ct & 1)
        a(f"ds_read_b64_tr_b16 v[{dst}:{dst+1}], v{va} offset:{off}")
        a(f"ds_read_b64_tr_b16 v[{dst+2}:{dst+3}], v{va+1} offset:{off + 3072}")
    for k in range(4): rdu(k, TB + 4*k)
    a(f"v_max3_f32 v{TM}, v{SA}, v{SA+1}, v{SA+2}")
    for r in range(3, 15, 2): a(f"v_max3_f32 v{TM}, v{TM}, v{SA+r}, v{SA+r+1}")
    a(f"v_max_f32 v{TM}, v{TM}, v{SA+15}")
    a(f"""
    s_cmp_eq_u32 s14, 0
    s_cbranch_scc1 L_c_slow
    v_cmp_lt_f32 vcc, {THR}, v{TM}
    s_cbranch_vccz L_c_fast
    L_c_slow:
    v_mov_b32 v19, v{TM}
    s_nop 1
    v_permlane32_swap_b32 v19, v{TM}
    s_nop 1
    v_max_f32 v{TM}, v{TM}, v19
    s_cmp_eq_u32 s14, 0
    s_cbranch_scc1 L_c_first
    v_max_f32 v{TM}, 0, v{TM}
    v_sub_f32 v19, 0, v{TM}
    v_exp_f32 v19, v19                       ; alpha
    s_nop 0
    v_mul_f32 v{LS}, v{LS}, v19
    """)
    for r in range(96): a(f"v_mul_f32 v{U+r}, v{U+r}, v19")
    a("L_c_first:")
    a(f"v_add_f32 v{MR}, v{MR}, v{TM}")
    for r in range(16): a(f"v_sub_f32 v{SA+r}, v{SA+r}, v{TM}")
    for r in range(16): a(f"v_sub_f32 v{NM+r}, v{NM+r}, v{TM}")
    a("L_c_fast:")
    for r in range(16): a(f"v_exp_f32 v{SA+r}, v{SA+r}")
    for r in range(0, 16, 2): a(f"v_cvt_pk_bf16_f32 v{PP + r//2}, v{SA+r}, v{SA+r+1}")
    for r in range(16): a(f"v_add_f32 v{LS}, v{LS}, v{SA+r}")
    for k in range(12):
        ct, kap = useq[k]
        out = min(3, 11 - k)
        a(f"s_waitcnt lgkmcnt({2*out})")
        b = TB + 4 * (k % 4)
        a(f"v_mfma_f32_32x32x16_bf16 v[{U+16*ct}:{U+16*ct+15}], v[{b}:{b+3}], v[{PP+4*kap}:{PP+4*kap+3}], v[{U+16*ct}:{U+16*ct+15}]")
        if k + 4 < 12: rdu(k + 4, b)
    for r in range(8, 16): a(f"v_add_u32 v{r}, 24576, v{r}")
    a(f"""
    v_add_u32 v21, 4, v21
    s_add_u32 s14, s14, 1
    s_cmp_lt_u32 s14, s10
    s_cbranch_scc1 L_c_tile
    """)
    stamp(a, o, 4)
    a(f"""
    s_waitcnt vmcnt(0)
    v_mov_b32 v21, {CNTW}
    v_mov_b32 v22, 1
    s_mov_b64 exec, 1
    ds_add_u32 v21, v22
    s_mov_b64 exec, -1
    """)
    wait_cnt(None, "L_c_ww")
    a(f"""
    v_lshrrev_b32 v20, 4, v1              ; g4
    v_and_b32 v22, 1, v20
    v_lshrrev_b32 v23, 1, v20
    v_mul_u32_u24 v22, 12, v22            ; g4&1 -> 12
    v_lshlrev_b32 v24, 2, v23             ; (g4>>1)*4
    v_xor_b32 v22, v22, v24               ; [0,12,4,8]
    v_lshrrev_b32 v23, 2, v1
    v_and_b32 v23, 3, v23                 ; rr
    v_add_u32 v22, v22, v23
    v_mul_u32_u24 v22, 96, v22
    v_and_b32 v23, 3, v1                  ; cc
    v_mul_u32_u24 v23, 24, v23
    v_add_u32 v22, v22, v23
    s_mul_i32 s9, s5, 36864
    v_add_u32 v8, s9, v22                 ; head a
    v_add_u32 v9, 18432, v8               ; head b
    """)
    HPK = 176
    dstmap = {0: 0, 1: 1, 4: 2, 5: 3, 2: 4, 3: 5, 6: 6, 7: 7}
    for ct in range(6):
        for i in range(8):
            a(f"v_cvt_pk_bf16_f32 v{HPK + 8*ct + dstmap[i]}, v{U+16*ct+2*i}, v{U+16*ct+2*i+1}")
    for ct in range(6):
        for i in range(4):
            a(f"v_permlane16_swap_b32 v{HPK+8*ct+i}, v{HPK+8*ct+4+i}")
    CX = 32
    WBF = 56
    cseq = [(hh, dt, ct) for hh in range(2) for dt in range(3) for ct in range(6)]
    def rdv(k, dst):
        hh, dt, ct = cseq[k]
        off = WREG + ct * 32 * 96 + 8 * dt
        a(f"ds_read_b64_tr_b16 v[{dst}:{dst+1}], v{8+hh} offset:{off}")
        a(f"ds_read_b64_tr_b16 v[{dst+2}:{dst+3}], v{8+hh} offset:{off + 16*96}")
    for k in range(6): rdv(k, WBF + 4*k)
    for k in range(36):
        hh, dt, ct = cseq[k]
        out = min(5, 35 - k)
        a(f"s_waitcnt lgkmcnt({2*out})")
        b = WBF + 4 * (k % 6)
        d = CX + 12*hh + 4*dt
        c = "0" if ct == 0 else f"v[{d}:{d+3}]"
        a(f"v_mfma_f32_16x16x32_bf16 v[{d}:{d+3}], v[{b}:{b+3}], v[{HPK+8*ct+4*hh}:{HPK+8*ct+4*hh+3}], {c}")
        if k + 6 < 36: rdv(k + 6, b)
    a(f"""
    v_mov_b32 v19, v{LS}
    s_nop 1
    v_permlane32_swap_b32 v19, v{LS}
    s_nop 1
    v_add_f32 v{LS}, v{LS}, v19
    v_mov_b32 v224, v{MR}
    v_mov_b32 v225, v{MR}
    v_mov_b32 v226, v{LS}
    v_mov_b32 v227, v{LS}
    s_nop 1
    v_permlane16_swap_b32 v224, v225
    v_permlane16_swap_b32 v226, v227         ; v226 = L a, v227 = L b
    """)
    stamp(a, o, 5)
    a("s_barrier")
    a(f"""
    s_lshl_b32 s9, s4, 12
    s_add_u32 s9, s9, {FREG}
    v_lshlrev_b32 v20, 4, v1
    v_add_u32 v20, s9, v20
    s_cmp_eq_u32 s6, 0
    s_cbranch_scc0 L_c_x1
    """)
    def send(src, M, L):
        a(f"ds_write_b128 v20, v[{src}:{src+3}]")
        a(f"ds_write_b128 v20, v[{src+4}:{src+7}] offset:1024")
        a(f"ds_write_b128 v20, v[{src+8}:{src+11}] offset:2048")
        a(f"v_mov_b32 v228, v{M}\nv_mov_b32 v229, v{L}")
        a(f"ds_write_b64 v20, v[228:229] offset:3072")
    KEEP = 56
    def keep(src, M, L):
        for r in range(12): a(f"v_mov_b32 v{KEEP+r}, v{src+r}")
        a(f"v_mov_b32 v{KEEP+12}, v{M}\nv_mov_b32 v{KEEP+13}, v{L}")
    send(CX+12, 225, 227); keep(CX, 224, 226)
    a("s_branch L_c_x2\nL_c_x1:")
    send(CX, 224, 226); keep(CX+12, 225, 227)
    a(f"""
    L_c_x2:
    s_waitcnt lgkmcnt(0)
    s_barrier
    s_xor_b32 s9, s4, 2
    s_lshl_b32 s9, s9, 12
    s_add_u32 s9, s9, {FREG}
    v_lshlrev_b32 v20, 4, v1
    v_add_u32 v20, s9, v20
    ds_read_b128 v[72:75], v20
    ds_read_b128 v[76:79], v20 offset:1024
    ds_read_b128 v[80:83], v20 offset:2048
    ds_read_b64 v[84:85], v20 offset:3072
    s_waitcnt lgkmcnt(0)
    v_max_f32 v86, v{KEEP+12}, v84          ; M
    v_sub_f32 v87, v{KEEP+12}, v86
    v_sub_f32 v88, v84, v86
    v_exp_f32 v87, v87
    v_exp_f32 v88, v88
    s_nop 0
    v_mul_f32 v89, v{KEEP+13}, v87
    v_fmac_f32 v89, v85, v88                ; L
    v_rcp_f32 v90, v89
    v_log_f32 v91, v89
    s_nop 0
    v_mul_f32 v87, v87, v90
    v_mul_f32 v88, v88, v90
    v_add_f32 v91, v91, v86                 ; m'
    """)
    for r in range(12):
        a(f"v_mul_f32 v{KEEP+r}, v{KEEP+r}, v87")
        a(f"v_fmac_f32 v{KEEP+r}, v{72+r}, v88")
    a(f"""
    v_cvt_pk_bf16_f32 v92, v{KEEP}, v{KEEP+1}
    v_cvt_pk_bf16_f32 v93, v{KEEP+2}, v{KEEP+3}
    v_cvt_pk_bf16_f32 v94, v{KEEP+4}, v{KEEP+5}
    v_mov_b32 v95, v91
    v_cvt_pk_bf16_f32 v96, v{KEEP+6}, v{KEEP+7}
    v_cvt_pk_bf16_f32 v97, v{KEEP+8}, v{KEEP+9}
    v_cvt_pk_bf16_f32 v98, v{KEEP+10}, v{KEEP+11}
    v_mov_b32 v99, v91
    v_and_b32 v20, 15, v1                   ; q
    s_mov_b32 s9, {224*512}
    v_mul_lo_u32 v20, v20, s9
    v_lshrrev_b32 v21, 4, v1
    v_lshlrev_b32 v21, 5, v21               ; g4*32
    v_add_u32 v20, v20, v21
    s_lshl_b32 s9, s5, 1
    s_add_u32 s9, s9, s6
    s_lshl_b32 s9, s9, 7
    s_lshl_b32 s8, s15, 9
    s_add_u32 s9, s9, s8
    s_add_u32 s9, s9, {WS_PART}
    buffer_store_dwordx4 v[92:95], v20, s[{S_WS}:{S_WS+3}], s9 offen sc1
    buffer_store_dwordx4 v[96:99], v20, s[{S_WS}:{S_WS+3}], s9 offen offset:16 sc1
    s_waitcnt vmcnt(0)
    """)
    stamp(a, o, 6)
    a(f"""
    v_mov_b32 v21, {CNTW+4}
    v_mov_b32 v22, 1
    s_mov_b64 exec, 1
    ds_add_rtn_u32 v23, v21, v22
    s_waitcnt lgkmcnt(0)
    v_readfirstlane_b32 s9, v23
    s_nop 1
    s_cmp_eq_u32 s9, 3
    s_cbranch_scc0 L_end
    v_mov_b32 v21, s15
    buffer_store_byte v22, v21, s[{S_DBG}:{S_DBG+3}], 0 offen offset:16 sc1
    """)
    stamp(a, o, 7)
    a("s_branch L_end")

def main():
    opts = {}
    out = sys.argv[1]
    for kv in sys.argv[2:]:
        k, v = kv.split("="); opts[k] = int(v)
    a = Asm()
    a(f"""
    s_cmp_ge_u32 s2, {NWG}
    s_cbranch_scc1 L_end
    s_load_dwordx16 s[16:31], s[0:1], 0
    s_load_dwordx8 s[32:39], s[0:1], 64
    v_lshrrev_b32 v1, 6, v0
    s_nop 0
    v_readfirstlane_b32 s3, v1
    s_cmp_lt_u32 s2, {NHELP}
    s_cbranch_scc1 L_helper
    s_sub_u32 s15, s2, {NHELP}
    s_cmp_ge_u32 s3, 4
    s_cbranch_scc1 L_consumer
    """)
    gen_producer(a, opts)
    gen_consumer(a, opts)
    gen_helper(a, opts)
    a("L_end:\ns_endpgm")
    lines = hazard.fix(a.lines, verbose=True)
    body = "\n".join(lines) + "\n"
    txt = build_file([f"; @launch grid=({NWG},1,1) block=(512,1,1) lds=163840"], [(NAME + "_kernel", body, 256, 102, 256)])
    open(out, "w").write(txt)
    print("instructions:", sum(1 for l in lines if l.strip() and not l.strip().endswith(":") and not l.strip().startswith(";")))

main()
```
